```python
import torch

def _softmax(x, axis=-1):
    return torch.softmax(x, dim=axis)
def _gelu(x):
    return torch.nn.functional.gelu(x, approximate="tanh")
def _silu(x):
    return torch.nn.functional.silu(x)
def _sigmoid(x):
    return torch.sigmoid(x)
def _layernorm(x, axis=-1, eps=1e-5):
    m = x.mean(dim=axis, keepdim=True)
    v = x.var(dim=axis, keepdim=True, unbiased=False)
    return (x - m) / torch.sqrt(v + eps)
def _scatter_add(tgt, idx, src, axis=0):
    return tgt.clone().index_add_(axis, idx, src)
def _segment_sum(src, seg, n):
    out = torch.zeros((n,) + src.shape[1:], dtype=src.dtype)
    return out.index_add_(0, seg, src)
def _pad(x, pw):
    flat = tuple(v for pair in reversed(pw) for v in pair)
    return torch.nn.functional.pad(x, flat)

kernel_name = 'parallel_sum__mha_block__glu_gated_bilinear__prompt'

def setup_inputs():

    _w = (lambda a: (lambda t: t.to(torch.bfloat16) if t.is_floating_point() else t)(torch.as_tensor(a)))
    def _A_setup():
        B, S, D, H = 1, 2048, 576, 32
        return {
            "x": _w((lambda *s: torch.randn(*s, dtype=torch.bfloat16) * 0.05)(B, S, D)),
            "wqkv": _w((lambda *s: torch.randn(*s, dtype=torch.bfloat16) * 0.05)(D, 3 * D)),
            "wo": _w((lambda *s: torch.randn(*s, dtype=torch.bfloat16) * 0.05)(D, D)),
        }
    _A_in = _A_setup()

    def _B_setup():
        B, S, D, F = 1, 2048, 576, 4608
        return {
            "x": _w((lambda *s: torch.randn(*s, dtype=torch.bfloat16) * 0.05)(B, S, D)),
            "w_gate": _w((lambda *s: torch.randn(*s, dtype=torch.bfloat16) * 0.4)(D, F) * (D ** -0.5)),
            "w_up": _w((lambda *s: torch.randn(*s, dtype=torch.bfloat16) * 0.4)(D, F) * (D ** -0.5)),
            "w_down": _w((lambda *s: torch.randn(*s, dtype=torch.bfloat16) * 0.4)(F, D) * (F ** -0.5)),
        }
    _B_in = _B_setup()

    return {
        "A_x": _A_in["x"],
        "A_wqkv": _A_in["wqkv"],
        "A_wo": _A_in["wo"],
        "B_x": _B_in["x"],
        "B_w_gate": _B_in["w_gate"],
        "B_w_up": _B_in["w_up"],
        "B_w_down": _B_in["w_down"],
    }

def reference(A_x, A_wqkv, A_wo, B_x, B_w_gate, B_w_up, B_w_down):
    def _A_ref(x, wqkv, wo):
        B, S, D = x.shape
        H = 32
        Dh = D // H
        qkv = (lambda x, *d: x.permute(*d))((x @ wqkv).reshape(B, S, 3, H, Dh), 2, 0, 3, 1, 4)
        q, k, v = qkv[0], qkv[1], qkv[2]
        scores = torch.einsum("bhqd,bhkd->bhqk", q, k) * (Dh ** -0.5)
        p = _softmax(scores, axis=-1)
        o = torch.einsum("bhqk,bhkd->bhqd", p, v)
        return (lambda x, *d: x.permute(*d))(o, 0, 2, 1, 3).reshape(B, S, D) @ wo

    def _B_ref(x, w_gate, w_up, w_down):
        g = torch.einsum("bsd,df->bsf", x, w_gate)
        u = torch.einsum("bsd,df->bsf", x, w_up)
        h = g * u
        return torch.einsum("bsf,fd->bsd", h, w_down)

    x = A_x
    xn = _layernorm(x, axis=-1)
    return x + _A_ref(xn, A_wqkv, A_wo) + _B_ref(xn, B_w_gate, B_w_up, B_w_down)
```

```python
import re

REG_RE = re.compile(r"(?<![\w.])([vas])(?:(\d+)|\[(\d+):(\d+)\])(?![\w])")


def regs_of(tok):
    out = []
    for m in REG_RE.finditer(tok):
        if m.group(2) is not None:
            out.append((m.group(1), int(m.group(2))))
        else:
            out += [(m.group(1), i) for i in range(int(m.group(3)), int(m.group(4)) + 1)]
    if re.search(r"\bvcc\b", tok):
        out.append(("s", "vcc"))
    if re.search(r"\bm0\b", tok):
        out.append(("s", "m0"))
    if re.search(r"\bexec\b", tok):
        out.append(("s", "exec"))
    return out


def R(cls, lo, n=1):
    return f"{cls}{lo}" if n == 1 else f"{cls}[{lo}:{lo + n - 1}]"


def v(lo, n=1): return R("v", lo, n)
def a(lo, n=1): return R("a", lo, n)
def s(lo, n=1): return R("s", lo, n)


TRANS = ("v_exp_f32", "v_log_f32", "v_rcp_f32", "v_rsq_f32", "v_sqrt_f32")


class Ins:
    __slots__ = ("text", "op", "kind", "rd", "wr", "passes", "srcc", "ab", "states", "data")

    def __init__(self, text):
        self.text = text
        t = text.split(";")[0].strip()
        self.rd, self.wr, self.srcc, self.ab, self.data = [], [], [], [], []
        self.passes = 0
        self.states = 1
        if not t or t.endswith(":") or t.startswith("."):
            self.op, self.kind, self.states = "", "label", 0
            return
        op, _, rest = t.partition(" ")
        self.op = op
        ops = [x.strip() for x in rest.split(",")] if rest else []
        if op.startswith("v_mfma") or op.startswith("v_smfmac"):
            self.kind = "mfma"
            self.passes = 4 if "16x16" in op else 8
            self.wr = regs_of(ops[0])
            self.ab = regs_of(ops[1]) + regs_of(ops[2])
            if op.startswith("v_smfmac"):
                self.srcc = regs_of(ops[0])
                self.ab += regs_of(ops[3])
            else:
                self.srcc = regs_of(ops[3])
            self.rd = self.ab + self.srcc
        elif op.startswith("v_"):
            self.kind = "valu"
            if op.startswith("v_permlane"):
                self.wr = regs_of(ops[0]) + regs_of(ops[1])
                self.rd = list(self.wr)
            elif op.startswith("v_cmp"):
                self.wr = regs_of(ops[0])
                self.rd = [r for o in ops[1:] for r in regs_of(o)]
            elif op in ("v_add_co_u32", "v_addc_co_u32"):
                self.wr = regs_of(ops[0]) + regs_of(ops[1])
                self.rd = [r for o in ops[2:] for r in regs_of(o)]
            else:
                self.wr = regs_of(ops[0]) if ops else []
                self.rd = [r for o in ops[1:] for r in regs_of(o)]
                if op.startswith("v_dot2c") or op.startswith("v_fmac"):
                    self.rd += self.wr
        elif op.startswith("ds_"):
            self.kind = "ds"
            if op.startswith("ds_read") or op.startswith("ds_bpermute"):
                self.wr = regs_of(ops[0])
                self.rd = [r for o in ops[1:] for r in regs_of(o)]
            else:
                self.rd = [r for o in ops for r in regs_of(o)]
        elif op.startswith("buffer_"):
            self.kind = "vmem"
            if op.startswith("buffer_load") and not t.rstrip().endswith("lds"):
                self.wr = regs_of(ops[0])
                self.rd = [r for o in ops[1:] for r in regs_of(o)]
            else:
                self.rd = [r for o in ops for r in regs_of(o)]
                if t.rstrip().endswith("lds"):
                    self.rd.append(("s", "m0"))
                elif op.startswith("buffer_store") and ("x4" in op or "x3" in op):
                    self.data = regs_of(ops[0])
        elif op == "s_nop":
            self.kind = "nop"
            self.states = int(ops[0], 0) + 1
        elif op.startswith("s_"):
            self.kind = "salu"
            if op.startswith(("s_cmp", "s_cbranch", "s_branch", "s_waitcnt", "s_barrier", "s_endpgm", "s_sleep",
                              "s_setprio")):
                self.rd = [r for o in ops for r in regs_of(o)]
            else:
                self.wr = regs_of(ops[0]) if ops else []
                self.rd = [r for o in ops[1:] for r in regs_of(o)]
                if "saveexec" in op:
                    self.wr.append(("s", "exec"))
        else:
            raise ValueError("unknown instruction: " + text)


MFMA_TO_VALU = {4: 8, 8: 12}
MFMA_TO_AB = {4: 8, 8: 12}
MFMA_TO_C_OVERLAP = {4: 6, 8: 10}
SRCC_WAR = {4: 3, 8: 7}


def check_hazards(ins, name=""):
    errs = []
    n = len(ins)
    for i, p in enumerate(ins):
        if p.kind in ("label", "nop"):
            continue
        pw = set(p.wr)
        dist = 0
        for j in range(i + 1, min(n, i + 40)):
            c = ins[j]
            if dist >= 21:
                break
            need = 0
            if c.kind not in ("label", "nop"):
                crd, cwr = set(c.rd), set(c.wr)
                if p.kind == "mfma":
                    if c.kind == "mfma":
                        if pw & set(c.ab):
                            need = max(need, MFMA_TO_AB[p.passes])
                        if pw & set(c.srcc):
                            if not (list(p.wr) == list(c.srcc) and p.passes == c.passes):
                                need = max(need, MFMA_TO_C_OVERLAP[p.passes])
                        if pw & cwr and not (pw & set(c.srcc)) and p.passes != c.passes:
                            need = max(need, MFMA_TO_VALU[p.passes])
                    elif c.kind in ("valu", "vmem", "ds"):
                        if pw & (crd | cwr):
                            need = max(need, MFMA_TO_VALU[p.passes])
                        if c.kind == "valu" and set(p.srcc) & cwr:
                            need = max(need, SRCC_WAR[p.passes])
                elif p.kind == "valu":
                    vw = {r for r in pw if r[0] in "va"}
                    sw = {r for r in pw if r[0] == "s"}
                    if c.kind == "mfma" and vw & crd:
                        need = max(need, 2)
                    if c.kind == "valu":
                        if c.op.startswith("v_permlane") and vw & crd:
                            need = max(need, 2)
                        if c.op.startswith(("v_readfirstlane", "v_readlane")) and vw & crd:
                            need = max(need, 1)
                        if p.op in TRANS and c.op not in TRANS and vw & crd:
                            need = max(need, 1)
                        if sw & crd:
                            need = max(need, 2)
                        if p.op.startswith("v_dot2") and vw & (crd | cwr):
                            same_acc = c.op == p.op and list(p.wr) == list(c.wr)
                            if not same_acc:
                                need = max(need, 3)
                    if p.op.startswith("v_dot2") and c.kind in ("vmem", "ds", "mfma") and vw & crd:
                        need = max(need, 3)
                    if c.kind == "vmem" and sw & crd:
                        need = max(need, 5)
                elif p.kind == "salu":
                    if ("s", "m0") in pw and c.kind == "vmem" and ("s", "m0") in crd:
                        need = max(need, 1)
                elif p.kind == "vmem" and p.data:
                    if set(p.data) & cwr:
                        need = max(need, 2 if c.kind == "valu" else 1)
                if need > dist:
                    errs.append(f"{name}: need {need} have {dist}:\n   [{i}] {p.text}\n   [{j}] {c.text}")
            dist += c.states
    return errs


class Prog:
    def __init__(self):
        self.ins = []
        self.vm = []
        self.lg = []
        self.pending = {}
        self.issued = set()

    def fork(self):
        q = Prog()
        q.vm, q.lg = list(self.vm), list(self.lg)
        q.pending = dict(self.pending)
        return q

    def _check_pending(self, ins):
        for r in ins.rd + ins.wr:
            if r in self.pending:
                raise AssertionError(f"register {r} touched while load {self.pending[r]} is outstanding: {ins.text}")

    def e(self, text, tag=None):
        for line in text.split("\n"):
            line = line.strip()
            if not line:
                continue
            ins = Ins(line)
            self._check_pending(ins)
            self.ins.append(ins)
            if tag:
                self.issued.add(tag)
            if ins.kind == "vmem":
                self.vm.append(tag or "_")
                assert len(self.vm) <= 63, "vmcnt overflow"
                for r in ins.wr:
                    self.pending[r] = ("vm", len(self.ins), tag)
            elif ins.kind == "ds":
                self.lg.append(tag or "_")
                assert len(self.lg) <= 15, "lgkmcnt overflow"
                for r in ins.wr:
                    self.pending[r] = ("lg", len(self.ins), tag)

    def _retire(self, kind, done_tags, left_tags):
        left = set(left_tags)
        for r, (k, _, t) in list(self.pending.items()):
            if k == kind and (t or "_") not in left:
                del self.pending[r]

    def n_vm(self, tags):
        tags = {tags} if isinstance(tags, str) else set(tags)
        idx = [i for i, t in enumerate(self.vm) if t in tags]
        return None if not idx else len(self.vm) - 1 - idx[-1]

    def n_lg(self, tags):
        tags = {tags} if isinstance(tags, str) else set(tags)
        idx = [i for i, t in enumerate(self.lg) if t in tags]
        return None if not idx else len(self.lg) - 1 - idx[-1]

    def wait(self, vm=None, lg=None, force=False):
        parts = []
        for tg in (vm, lg):
            if tg is not None and tg != "all":
                for x in ([tg] if isinstance(tg, str) else tg):
                    assert x in self.issued, f"wait on {x} before it was issued"
        if vm is not None:
            n = 0 if vm == "all" else self.n_vm(vm)
            if n is not None and (n < len(self.vm) or force):
                parts.append(f"vmcnt({n})")
                done, self.vm = self.vm[:len(self.vm) - n], self.vm[len(self.vm) - n:]
                self._retire("vm", done, self.vm)
        if lg is not None:
            n = 0 if lg == "all" else self.n_lg(lg)
            if n is not None and (n < len(self.lg) or force):
                parts.append(f"lgkmcnt({n})")
                done, self.lg = self.lg[:len(self.lg) - n], self.lg[len(self.lg) - n:]
                self._retire("lg", done, self.lg)
        if parts:
            self.ins.append(Ins("s_waitcnt " + " ".join(parts)))
            return True
        return False

    def text(self):
        return "\n".join(("" if i.kind == "label" else "    ") + i.text for i in self.ins) + "\n"
```

```python
import math
import struct
import sys
from asmlib import Prog, check_hazards, v, a, s

NAME = "parallel_sum__mha_block__glu_gated_bilinear__prompt"
OOB = 0x80000000
LDS_OOB = 0x80000

IMG = 19456
WS_FLAGS = 0
WS_Q = 0x10000
WS_KV = WS_Q + 256 * IMG
WS_OM = WS_KV + 256 * IMG
WS_OE = WS_OM + 256 * 8192
WS_PART = 0xC00000
WS_STAMP = 0x3000000
WS_BYTES = 0x3100000
assert WS_OE + 256 * 1024 <= WS_PART

S_X, S_QKV, S_WO, S_WG, S_WU, S_WD, S_OUT, S_DBG, S_WS, S_HALF, S_CODE = 4, 8, 12, 16, 20, 24, 28, 32, 36, 40, 44
sW, sW1K, sRB, sC = 68, 69, 70, 71
sQX, sQY, sG0, sH, sD0, sDH = 72, 73, 74, 75, 76, 77
sOFF, sT0, sT1 = 78, 79, 80
sSCX, sSCY, sIMX, sIMY, sPART, sKV, sKVM = 81, 82, 83, 84, 85, 86, 87
sSPIN, sOFF2, sQB, sPR, sXR, sWOB, sWOM, sOST, sOLD, sFB = 88, 89, 90, 91, 92, 93, 94, 95, 96, 97
sBX, sBY = 98, 99
STAMP0 = 48

V_LANE = 0
TRA = 4
TRH = 16
VQ, VG, VH, VD, PST, VDBG = 20, 21, 22, 23, 24, 25
EAX, EAY, EA1 = 26, 30, 34
ACC = (48, 80)
XN = 112
SB, CB, OB, QM, QE = 112, 160, 192, 224, 232
RACC = 80
PARKED = ["KA0", "KA1", "KA2", "KE0", "KE1", "KE2", "VA0", "VA1", "VA2", "IDX", "VKV", "VPR", "VPR4", "VXR", "VXR4",
          "VWO0", "VWO1", "VWO2", "VWO3", "VWO4", "VWE0", "VWE1", "VWE2", "FLA", "POA", "OSM", "OSE", "OLM", "OLE",
          "OUA", "OU4", "SNAP", "FOLD", "WOA0", "WOA1", "VQM", "VQE"]
PV = {}
for _i, _n in enumerate(PARKED):
    PV[_n] = 48 + _i if _i < 32 else 16 + (_i - 32)
A_H, A_RING, A_SEL, A_PARK = 0, 72, 100, 108
A_KM, A_KE, A_V = 148, 156, 164
PA = {n: A_PARK + i for i, n in enumerate(PARKED)}
assert A_PARK + len(PARKED) <= A_KM
PFRAG = [4 * i for i in range(25)] + [180 + 4 * i for i in range(16)]
assert len(PFRAG) == 41 and PFRAG[-1] + 4 <= 256

D_PF = 6
NRING = 7
Z = [20480 * i for i in range(8)]
KV_SLOT = [6, 7, 0, 1, 2, 3, 4, 5, 6, 7, 3, 4, 5, 6, 7, 4]
WO_SLOT = [0, 1, 2, 3, 5]
SPIN_LIMIT = 1 << 18


def f32(x):
    return struct.unpack("<I", struct.pack("<f", x))[0]


class Cfg:
    xmap = 1
    stamps = False
    stop_after = None
    force_fallback = False
    code_kb = 104


class Gen:
    def __init__(self, cfg):
        self.cfg = cfg
        self.nstamp = 0

    def stamp(self, p):
        if self.cfg.stamps:
            assert self.nstamp < 10
            p.e(f"s_memtime {s(STAMP0 + 2 * self.nstamp, 2)}")
            self.nstamp += 1

    @staticmethod
    def park(p, name, src):
        p.e(f"v_accvgpr_write_b32 {a(PA[name])}, {v(src)}")

    def prologue(self, p):
        cfg = self.cfg
        p.e(f"""
        s_cmp_ge_u32 s2, 256
        s_cbranch_scc1 L_exit
        s_load_dwordx16 s[48:63], s[0:1], 0
        s_load_dwordx4 s[64:67], s[0:1], 64
        s_getpc_b64 s[44:45]
        v_lshrrev_b32 v1, 6, v0
        v_and_b32 v0, 63, v0
        s_and_b32 s44, s44, 0xffffff00
        v_readfirstlane_b32 {s(sW)}, v1
        s_mov_b32 s46, L_code_end-{NAME}_kernel
        s_mov_b32 s47, 0x20000
        s_and_b32 {s(sT0)}, s2, 7
        s_lshr_b32 {s(sT1)}, s2, 3
        """)
        nc = (1, 2, 3)[cfg.xmap]
        p.e(f"""
        s_and_b32 {s(sC)}, {s(sT0)}, {(16 >> nc) - 1}
        s_lshl_b32 {s(sC)}, {s(sC)}, {nc}
        s_and_b32 {s(sOFF)}, {s(sT1)}, {(1 << nc) - 1}
        s_add_u32 {s(sC)}, {s(sC)}, {s(sOFF)}
        s_lshr_b32 {s(sRB)}, {s(sT0)}, {4 - nc}
        s_lshl_b32 {s(sRB)}, {s(sRB)}, {5 - nc}
        s_lshr_b32 {s(sOFF)}, {s(sT1)}, {nc}
        s_add_u32 {s(sRB)}, {s(sRB)}, {s(sOFF)}
        s_lshl_b32 {s(sW1K)}, {s(sW)}, 10
        """)
        p.e(f"""
        v_and_b32 v1, 15, v0
        v_lshrrev_b32 v2, 4, v0
        s_lshl_b32 {s(sOFF)}, {s(sW)}, 5
        v_add_u32 v3, {s(sOFF)}, v1
        v_mul_u32_u24 v3, 1152, v3
        v_lshl_add_u32 v3, v2, 4, v3
        s_mul_i32 {s(sOFF)}, {s(sRB)}, 147456
        s_add_u32 {s(sOFF2)}, {s(sOFF)}, 18432
        s_waitcnt lgkmcnt(0)
        """)
        for base, src, size in ((S_X, 48, 2359296), (S_QKV, 50, 1990656), (S_WO, 52, 663552), (S_WG, 56, 5308416),
                                (S_WU, 58, 5308416), (S_WD, 60, 5308416), (S_OUT, 62, 2359296), (S_DBG, 64, 256),
                                (S_WS, 66, WS_BYTES)):
            p.e(f"""
            s_mov_b32 {s(base)}, {s(src)}
            s_mov_b32 {s(base + 1)}, {s(src + 1)}
            s_mov_b32 {s(base + 2)}, {size}
            s_mov_b32 {s(base + 3)}, 0x20000
            """)
            if base == S_X:
                for ks in range(18):
                    for tau in range(2):
                        p.e(f"buffer_load_dwordx4 {v(XN + 8 * ks + 4 * tau, 4)}, v3, {s(S_X, 4)}, "
                            f"{s(sOFF2 if tau else sOFF)} offen offset:{64 * ks}", tag=f"x{ks}")
        p.e(f"""
        s_cmp_ge_u32 {s(sW)}, 2
        s_cselect_b32 {s(S_HALF)}, s58, s56
        s_cselect_b32 {s(S_HALF + 1)}, s59, s57
        s_mov_b32 {s(S_HALF + 2)}, 5308416
        s_mov_b32 {s(S_HALF + 3)}, 0x20000
        """)
        self.stamp(p)
        nlines = cfg.code_kb * 8 // 32
        p.e(f"""
        s_mul_i32 {s(sOFF)}, {s(sT1)}, {nlines * 128}
        v_lshlrev_b32 v38, 7, v0
        v_mov_b32 v39, {OOB}
        v_cmp_gt_u32 vcc, {nlines}, v0
        s_cmp_eq_u32 {s(sW)}, 0
        s_cselect_b64 vcc, vcc, 0
        v_cndmask_b32 v38, v39, v38, vcc
        """)
        p.e(f"buffer_load_dword v47, v38, {s(S_CODE, 4)}, {s(sOFF)} offen", tag="code")
        p.e(f"""
        v_lshrrev_b32 v38, 3, v0
        s_lshl_b32 {s(sOFF)}, {s(sW)}, 3
        v_add_u32 v39, {s(sOFF)}, v38
        v_and_b32 v40, 1, v2
        s_and_b32 {s(sT0)}, {s(sW)}, 1
        s_lshl_b32 {s(sT0)}, {s(sT0)}, 1
        v_or_b32 v40, {s(sT0)}, v40
        v_lshlrev_b32 v40, 1, v40
        v_and_b32 v41, 7, v0
        v_xor_b32 v40, v40, v41
        v_lshlrev_b32 v40, 4, v40
        v_mul_u32_u24 {v(VQ)}, 3456, v39
        v_add_u32 {v(VQ)}, {v(VQ)}, v40
        v_mul_u32_u24 {v(VG)}, 9216, v39
        v_add_u32 {v(VG)}, {v(VG)}, v40
        v_lshrrev_b32 v41, 5, v0
        v_lshlrev_b32 v41, 4, v41
        v_and_b32 v42, 3, v38
        s_lshl_b32 {s(sT0)}, {s(sW)}, 2
        v_add3_u32 v41, v41, v42, {s(sT0)}
        v_mul_u32_u24 {v(VD)}, 1152, v41
        v_add_u32 {v(VD)}, {v(VD)}, v40
        v_lshrrev_b32 v41, 2, v0
        s_and_b32 {s(sT0)}, {s(sW)}, 1
        s_lshl_b32 {s(sT0)}, {s(sT0)}, 4
        v_add_u32 v41, {s(sT0)}, v41
        v_mul_u32_u24 {v(VH)}, 9216, v41
        v_lshrrev_b32 v41, 5, v0
        v_lshlrev_b32 v41, 1, v41
        v_and_b32 v42, 3, v0
        v_xor_b32 v41, v41, v42
        v_lshl_add_u32 {v(VH)}, v41, 4, {v(VH)}
        """)
        p.e(f"""
        s_lshl_b32 {s(sQY)}, {s(sC)}, 7
        s_add_u32 {s(sT0)}, {s(sC)}, 18
        s_add_u32 {s(sT1)}, {s(sC)}, 7
        s_cmp_lt_u32 {s(sC)}, 9
        s_cselect_b32 {s(sQX)}, {s(sT0)}, {s(sT1)}
        s_lshl_b32 {s(sQX)}, {s(sQX)}, 7
        s_lshr_b32 {s(sT0)}, {s(sC)}, 1
        s_mul_i32 {s(sT0)}, {s(sT0)}, 576
        s_and_b32 {s(sT1)}, {s(sC)}, 1
        s_mul_i32 {s(sG0)}, {s(sT1)}, 320
        s_add_u32 {s(sG0)}, {s(sG0)}, {s(sT0)}
        s_lshl_b32 {s(sH)}, {s(sT1)}, 5
        s_add_u32 {s(sH)}, {s(sH)}, {s(sT0)}
        s_add_u32 {s(sH)}, {s(sH)}, 256
        s_mul_i32 {s(sD0)}, {s(sG0)}, 1152
        s_mul_i32 {s(sDH)}, {s(sH)}, 1152
        s_lshl_b32 {s(sG0)}, {s(sG0)}, 1
        s_lshl_b32 {s(sH)}, {s(sH)}, 1
        """)

    def addresses(self, p):
        p.e(f"""
        v_lshrrev_b32 v38, 2, v1
        v_lshl_add_u32 v39, v2, 3, v38
        v_lshrrev_b32 v40, 1, v38
        v_and_b32 v41, 1, v2
        v_lshl_add_u32 v40, v41, 1, v40
        v_and_b32 v42, 3, v0
        v_lshlrev_b32 v42, 3, v42
        v_lshl_add_u32 v43, v39, 7, v42
        v_lshl_add_u32 v44, v39, 6, v42
        """)
        for t in range(4):
            p.e(f"""
            v_xor_b32 v45, {t}, v40
            v_lshl_add_u32 {v(TRA + t)}, v45, 5, v43
            v_add_u32 {v(TRA + 4 + t)}, 0x10000, {v(TRA + t)}
            v_add_u32 {v(TRA + 8 + t)}, 0x20000, {v(TRA + t)}
            """)
        for ch in range(2):
            p.e(f"""
            v_xor_b32 v45, {ch}, v41
            v_lshl_add_u32 {v(TRH + ch)}, v45, 5, v44
            v_add_u32 {v(TRH + 2 + ch)}, 0x10000, {v(TRH + ch)}
            """)
        p.e(f"""
        v_lshlrev_b32 v45, 1, v41
        v_lshrrev_b32 v46, 1, v2
        v_add_u32 v45, v45, v46
        v_lshlrev_b32 v45, 8, v45
        v_lshl_add_u32 {v(PST)}, v1, 4, v45
        v_mov_b32 v39, {OOB}
        v_mov_b32 v3, 0
        v_add_u32 v45, {s(sW)}, v0
        v_cmp_eq_u32 vcc, 0, v45
        s_lshl_b32 {s(sT0)}, {s(sRB)}, 3
        s_lshl_b32 {s(sT1)}, {s(sW)}, 1
        v_cndmask_b32 {v(VDBG)}, v39, v3, vcc
        s_add_u32 {s(sT0)}, {s(sT0)}, {s(sT1)}
        s_lshl_b32 {s(sT0)}, {s(sT0)}, 4
        s_add_u32 {s(sT0)}, {s(sT0)}, {s(sC)}
        s_mul_i32 {s(sPART)}, {s(sT0)}, 18432
        s_add_u32 {s(sPART)}, {s(sPART)}, {WS_PART}
        """)
        p.e(f"""
        s_mul_i32 {s(sT0)}, {s(sRB)}, {IMG}
        s_add_u32 {s(sIMX)}, {s(sT0)}, {WS_KV}
        s_add_u32 {s(sT1)}, {s(sT0)}, {WS_Q}
        s_mov_b32 {s(sSCX)}, 1.0
        s_mov_b32 {s(sOFF)}, {hex(f32(math.log2(math.e) / math.sqrt(18.0)))}
        s_sub_u32 {s(sOFF2)}, {s(sC)}, 9
        s_cmp_lt_u32 {s(sC)}, 9
        s_cselect_b32 {s(sIMY)}, {s(sT1)}, {s(sIMX)}
        s_cselect_b32 {s(sSCY)}, {s(sOFF)}, {s(sSCX)}
        s_cselect_b32 {s(sBY)}, {s(sC)}, {s(sOFF2)}
        s_sub_u32 {s(sOFF2)}, {s(sC)}, 2
        s_cmp_lt_u32 {s(sC)}, 9
        s_cselect_b32 {s(sBX)}, {s(sC)}, {s(sOFF2)}
        """)
        p.e("\n".join(f"v_mov_b32 {v(r)}, {OOB}" for r in list(range(EAX, EAX + 4)) + list(range(EA1, EA1 + 4))))
        self.qk_addr(p, EAY, sBY)
        self.attn_addresses(p)

    def qk_addr(self, p, ea, sblk):
        p.e(f"""
        v_lshrrev_b32 v38, 2, v1
        v_and_b32 v39, 3, v1
        v_lshl_add_u32 v38, v38, 3, v39
        v_lshlrev_b32 v38, 4, v38
        s_lshl_b32 {s(sT0)}, {s(sblk)}, 4
        s_lshr_b32 {s(sT1)}, {s(sW)}, 1
        s_lshl_b32 {s(sT1)}, {s(sT1)}, 9
        s_and_b32 {s(sOFF)}, {s(sW)}, 1
        s_lshl_b32 {s(sOFF)}, {s(sOFF)}, 3
        s_add_u32 {s(sT1)}, {s(sT1)}, {s(sOFF)}
        s_add_u32 {s(sT1)}, {s(sT1)}, 8192
        s_mov_b32 {s(sOFF)}, {16 * IMG}
        v_mov_b32 v46, {s(sT1)}
        """)
        for t in range(4):
            p.e(f"""
            v_add3_u32 v39, v2, {s(sT0)}, {4 * t}
            v_mul_u32_u24 v40, 57, v39
            v_lshrrev_b32 v40, 9, v40
            v_mul_u32_u24 v41, 9, v40
            v_sub_u32 v41, v39, v41
            v_cmp_lt_u32 vcc, 4, v41
            v_mul_lo_u32 v40, v40, {s(sOFF)}
            v_subrev_u32 v42, 5, v41
            v_cndmask_b32 v42, v41, v42, vcc
            v_cndmask_b32 v43, 0, 1, vcc
            v_lshlrev_b32 v43, 12, v43
            v_lshrrev_b32 v44, 1, v42
            v_lshl_add_u32 v43, v44, 9, v43
            v_and_b32 v44, 1, v42
            v_lshl_add_u32 v43, v44, 3, v43
            v_cmp_eq_u32 vcc, 4, v41
            v_add_u32 v43, {s(sW1K)}, v43
            s_nop 0
            v_cndmask_b32 v43, v43, v46, vcc
            v_add3_u32 {v(ea + t)}, v40, v43, v38
            """)

    def v_addr(self, p):
        p.e(f"""
        s_lshl_b32 {s(sT0)}, {s(sBX)}, 6
        s_mul_i32 {s(sT1)}, {s(sW)}, 1216
        s_add_u32 {s(sT1)}, {s(sT1)}, 9216
        v_mul_u32_u24 v38, 304, v2
        v_add_u32 v38, {s(sT1)}, v38
        s_mov_b32 {s(sOFF)}, {16 * IMG}
        v_mov_b32 v46, {OOB}
        """)
        for t in range(4):
            p.e(f"""
            v_add3_u32 v39, v1, {s(sT0)}, {16 * t}
            v_mul_u32_u24 v40, 3641, v39
            v_lshrrev_b32 v40, 16, v40
            v_mul_u32_u24 v41, 18, v40
            v_sub_u32 v41, v39, v41
            v_lshrrev_b32 v42, 1, v40
            v_mul_lo_u32 v42, v42, {s(sOFF)}
            v_and_b32 v40, 1, v40
            v_mul_u32_u24 v40, 4864, v40
            v_lshl_add_u32 v40, v41, 4, v40
            v_cmp_eq_u32 vcc, 17, v41
            v_add3_u32 {v(EAX + t)}, v40, v42, v38
            v_add_u32 v43, 16, {v(EAX + t)}
            v_cndmask_b32 {v(EA1 + t)}, v46, v43, vcc
            """)

    def attn_addresses(self, p):
        park = lambda n, r: self.park(p, n, r)
        p.e(f"""
        s_and_b32 {s(sT0)}, {s(sW)}, 1
        v_lshlrev_b32 v38, 4, v0
        s_lshl_b32 {s(sT1)}, {s(sT0)}, 12
        v_add_u32 v39, {s(sT1)}, v38
        v_add_u32 v40, 0x2000, v38
        """)
        park("VKV", 38)
        park("VQM", 39)
        for w in range(3):
            park(f"KA{w}", 39)
            park(f"KE{w}", 40)
            if w < 2:
                p.e("v_add_u32 v39, 0x10000, v39\nv_add_u32 v40, 0x10000, v40")
        p.e(f"""
        v_and_b32 v38, 31, v0
        v_lshrrev_b32 v39, 5, v0
        v_bfe_u32 v40, v38, 2, 1
        v_bfe_u32 v41, v38, 3, 1
        v_and_b32 v42, 3, v38
        v_lshl_add_u32 v42, v41, 2, v42
        v_lshl_add_u32 v42, v40, 3, v42
        v_cmp_gt_u32 vcc, 16, v38
        s_mul_i32 {s(sT1)}, {s(sT0)}, 4864
        s_add_u32 {s(sT1)}, {s(sT1)}, 9216
        v_cndmask_b32 v42, v38, v42, vcc
        v_cmp_eq_u32 vcc, 28, v38
        v_mov_b32 v43, 18
        v_mul_u32_u24 v44, 304, v39
        v_cndmask_b32 v42, v42, v43, vcc
        v_cmp_gt_u32 vcc, 19, v42
        v_lshl_add_u32 v44, v42, 4, v44
        v_add_u32 v44, {s(sT1)}, v44
        v_mov_b32 v43, {LDS_OOB}
        v_cndmask_b32 v44, v43, v44, vcc
        """)
        for w in range(3):
            park(f"VA{w}", 44)
            if w < 2:
                p.e("v_add_u32 v44, 0x10000, v44")
        p.e("v_mov_b32 v44, 0xdddddddd")
        park("IDX", 44)
        p.e(f"""
        s_lshl_b32 {s(sT1)}, {s(sT0)}, 2
        v_lshlrev_b32 v44, 4, v38
        v_add_u32 v44, {s(sT1)}, v44
        """)
        park("VQE", 44)
        p.e(f"""
        v_bfe_u32 v40, v38, 2, 1
        v_lshrrev_b32 v41, 3, v38
        v_and_b32 v42, 3, v38
        v_lshl_add_u32 v42, v41, 2, v42
        v_lshl_add_u32 v42, v40, 4, v42
        s_lshr_b32 {s(sOFF)}, {s(sW)}, 1
        s_lshl_b32 {s(sOFF)}, {s(sOFF)}, 6
        v_add_u32 v42, {s(sOFF)}, v42
        v_lshlrev_b32 v43, 4, v42
        v_lshl_add_u32 v43, v39, 11, v43
        s_lshl_b32 {s(sOFF)}, {s(sT0)}, 12
        v_add_u32 v43, {s(sOFF)}, v43
        v_lshlrev_b32 v44, 3, v42
        v_add_u32 v44, {s(sT1)}, v44
        v_cmp_eq_u32 vcc, 0, v39
        v_mov_b32 v46, {OOB}
        v_add_u32 v44, {WS_OE - WS_OM}, v44
        v_cndmask_b32 v44, v46, v44, vcc
        """)
        park("OSM", 43)
        park("OSE", 44)
        p.e(f"""
        v_lshrrev_b32 v38, 1, v2
        v_and_b32 v39, 1, v2
        v_mul_u32_u24 v40, 18432, v38
        v_lshl_add_u32 v40, v39, 8, v40
        v_lshl_add_u32 v40, v1, 4, v40
        v_mul_u32_u24 v41, 18432, v2
        v_lshl_add_u32 v41, v1, 4, v41
        v_mul_u32_u24 v42, 1152, v1
        v_lshl_add_u32 v43, v2, 4, v42
        v_cmp_gt_u32 vcc, 2, v2
        v_lshl_add_u32 v44, v2, 3, v42
        v_add_u32 v44, 128, v44
        v_cndmask_b32 v43, v46, v43, vcc
        v_cndmask_b32 v44, v46, v44, vcc
        v_cmp_eq_u32 vcc, 0, v2
        v_lshl_add_u32 v45, v39, 5, v42
        v_lshl_add_u32 v45, v38, 4, v45
        v_cndmask_b32 v42, v46, v42, vcc
        """)
        park("VPR", 40)
        park("VPR4", 41)
        park("VXR", 43)
        park("OU4", 44)
        park("OUA", 45)
        park("VXR4", 42)
        p.e(f"""
        v_lshlrev_b32 v40, 11, v2
        v_lshl_add_u32 v41, v1, 4, v40
        v_lshl_add_u32 v42, v1, 3, v40
        """)
        park("OLM", 41)
        park("OLE", 42)
        p.e(f"""
        v_lshrrev_b32 v40, 2, v1
        v_lshl_add_u32 v40, v39, 2, v40
        v_lshl_add_u32 v40, v38, 4, v40
        v_mul_u32_u24 v40, 160, v40
        v_and_b32 v41, 3, v0
        v_lshl_add_u32 v40, v41, 3, v40
        v_add_u32 v41, 0x10000, v40
        """)
        park("WOA0", 40)
        park("WOA1", 41)

        def wo_src(idx_expr_setup, ext):
            p.e(idx_expr_setup)
            p.e(f"""
            v_mul_u32_u24 v39, 0x199a, v38
            v_lshrrev_b32 v39, 16, v39
            v_mul_u32_u24 v40, 10, v39
            v_sub_u32 v40, v38, v40
            v_lshrrev_b32 v41, 4, v39
            v_bfe_u32 v42, v39, 2, 1
            v_bfe_u32 v43, v39, 3, 1
            v_and_b32 v44, 3, v39
            """)
            if not ext:
                p.e("""
                v_mul_u32_u24 v41, 18, v41
                v_lshl_add_u32 v41, v42, 3, v41
                v_lshl_add_u32 v41, v43, 2, v41
                v_add_u32 v41, v41, v44
                """)
            else:
                p.e("""
                v_lshl_add_u32 v41, v41, 1, v42
                v_lshl_add_u32 v41, v41, 1, v43
                v_mul_u32_u24 v41, 36, v41
                v_lshrrev_b32 v42, 1, v44
                v_mul_u32_u24 v42, 18, v42
                v_and_b32 v44, 1, v44
                v_add3_u32 v41, v41, v42, v44
                v_add_u32 v41, 16, v41
                """)
            p.e("v_mul_u32_u24 v45, 1152, v41\nv_lshl_add_u32 v45, v40, 4, v45")

        for pp in range(5):
            wo_src(f"v_add_u32 v38, {64 * pp}, v0", False)
            park(f"VWO{pp}", 45)
        for y in range(3):
            wo_src(f"""
            s_mul_i32 {s(sT1)}, {s(sW)}, 3
            s_min_u32 {s(sT1)}, {s(sT1)}, 7
            s_add_u32 {s(sT1)}, {s(sT1)}, {y}
            s_cmp_ge_u32 {s(sT1)}, 5
            s_cselect_b32 {s(sOFF)}, 5, 0
            s_cselect_b32 {s(sOFF2)}, {288 * 1152}, 0
            s_sub_u32 {s(sT1)}, {s(sT1)}, {s(sOFF)}
            s_lshl_b32 {s(sT1)}, {s(sT1)}, 6
            v_add_u32 v38, {s(sT1)}, v0
            """, True)
            p.e(f"v_add_u32 v45, {s(sOFF2)}, v45")
            park(f"VWE{y}", 45)
        p.e(f"""
        v_and_b32 v39, 1, v2
        v_lshlrev_b32 v39, 3, v39
        v_sub_u32 v39, v1, v39
        v_mov_b32 v40, 0x3f80
        v_mov_b32 v41, 0x3f800000
        """)
        for which, src in ((0, 39), (1, 1)):
            for jj in range(4):
                p.e(f"""
                v_cmp_eq_u32 vcc, {2 * jj}, {v(src)}
                v_mov_b32 v42, 0
                s_nop 0
                v_cndmask_b32 v42, v42, v40, vcc
                v_cmp_eq_u32 vcc, {2 * jj + 1}, {v(src)}
                s_nop 1
                v_cndmask_b32 v42, v42, v41, vcc
                v_accvgpr_write_b32 {a(A_SEL + 4 * which + jj)}, v42
                """)
        p.e(f"""
        s_lshr_b32 {s(sT1)}, {s(sC)}, 3
        s_lshl_b32 {s(sOFF)}, {s(sRB)}, 1
        s_add_u32 {s(sOFF2)}, {s(sOFF)}, {s(sT1)}
        s_lshl_b32 {s(sOFF2)}, {s(sOFF2)}, 7
        v_and_b32 v38, 31, v0
        v_lshlrev_b32 v38, 2, v38
        v_add_u32 v38, {s(sOFF2)}, v38
        s_lshr_b32 {s(sOFF2)}, {s(sW)}, 1
        s_add_u32 {s(sOFF)}, {s(sOFF)}, {s(sOFF2)}
        s_lshl_b32 {s(sOFF)}, {s(sOFF)}, 5
        s_lshl_b32 {s(sOFF2)}, {s(sC)}, 1
        s_add_u32 {s(sOFF)}, {s(sOFF)}, {s(sOFF2)}
        s_add_u32 {s(sOFF)}, {s(sOFF)}, {s(sT0)}
        s_lshl_b32 {s(sOFF)}, {s(sOFF)}, 2
        v_mov_b32 v39, {s(sOFF)}
        v_cmp_eq_u32 vcc, 0, v0
        """)
        park("POA", 38)
        p.e(f"buffer_load_dword {a(PA['SNAP'])}, v38, {s(S_WS, 4)}, 0 offen sc1", tag="snap")
        p.e(f"buffer_load_dword {a(PA['FOLD'])}, v39, {s(S_WS, 4)}, 0 offen sc1", tag="snap")
        p.e("v_cndmask_b32 v39, v46, v39, vcc")
        park("FLA", 39)
        p.e(f"""
        s_mul_i32 {s(sKVM)}, {s(sW)}, 5
        s_min_u32 {s(sKVM)}, {s(sKVM)}, 14
        s_lshl_b32 {s(sKVM)}, {s(sKVM)}, 10
        s_mul_i32 {s(sFB)}, {s(sC)}, {16 * IMG}
        s_mul_i32 {s(sOFF)}, {s(sRB)}, {IMG}
        s_add_u32 {s(sQB)}, {s(sFB)}, {s(sOFF)}
        s_add_u32 {s(sQB)}, {s(sQB)}, {WS_Q}
        s_add_u32 {s(sFB)}, {s(sFB)}, {WS_KV}
        s_add_u32 {s(sKV)}, {s(sFB)}, {s(sKVM)}
        s_lshl_b32 {s(sT1)}, {s(sT1)}, 2
        s_add_u32 {s(sT1)}, {s(sT1)}, {s(sW)}
        s_and_b32 {s(sT0)}, {s(sC)}, 7
        s_lshl_b32 {s(sOFF)}, {s(sRB)}, 3
        s_add_u32 {s(sOFF)}, {s(sOFF)}, {s(sT1)}
        s_mul_i32 {s(sPR)}, {s(sOFF)}, {16 * 18432}
        s_mul_i32 {s(sOFF2)}, {s(sT0)}, {9 * 256}
        s_add_u32 {s(sPR)}, {s(sPR)}, {s(sOFF2)}
        s_add_u32 {s(sPR)}, {s(sPR)}, {WS_PART}
        s_mul_i32 {s(sXR)}, {s(sOFF)}, {16 * 1152}
        s_mul_i32 {s(sOFF2)}, {s(sT0)}, 144
        s_add_u32 {s(sXR)}, {s(sXR)}, {s(sOFF2)}
        s_mul_i32 {s(sWOB)}, {s(sW)}, {36 * 1152}
        s_add_u32 {s(sWOB)}, {s(sWOB)}, {s(sOFF2)}
        s_mul_i32 {s(sWOM)}, {s(sW)}, 5120
        s_lshl_b32 {s(sOFF)}, {s(sRB)}, 4
        s_add_u32 {s(sOST)}, {s(sOFF)}, {s(sC)}
        s_lshl_b32 {s(sOLD)}, {s(sT1)}, 4
        """)

    def layernorm(self, p):
        ones, sm, sq = 40, (48, 52), (56, 58)
        p.e("\n".join(f"v_mov_b32 {v(ones + i)}, 0x3f803f80" for i in range(4)))
        p.e("\n".join(f"v_mov_b32 {v(56 + i)}, 0" for i in range(4)))
        for ks in range(18):
            p.wait(vm=f"x{ks}")
            for tau in range(2):
                x = XN + 8 * ks + 4 * tau
                c = "0" if ks == 0 else v(sm[tau], 4)
                p.e(f"v_mfma_f32_16x16x32_bf16 {v(sm[tau], 4)}, {v(ones, 4)}, {v(x, 4)}, {c}")
                for j in range(4):
                    p.e(f"v_dot2c_f32_bf16 {v(sq[tau] + (j >> 1))}, {v(x + j)}, {v(x + j)}")
        p.e("s_nop 2")
        for tau in range(2):
            p.e(f"v_add_f32 {v(sq[tau])}, {v(sq[tau])}, {v(sq[tau] + 1)}")
        for swap in ("v_permlane16_swap_b32", "v_permlane32_swap_b32"):
            for tau in range(2):
                p.e(f"v_mov_b32 {v(sq[tau] + 1)}, {v(sq[tau])}")
            p.e("s_nop 0")
            for tau in range(2):
                p.e(f"{swap} {v(sq[tau])}, {v(sq[tau] + 1)}")
            for tau in range(2):
                p.e(f"v_add_f32 {v(sq[tau])}, {v(sq[tau])}, {v(sq[tau] + 1)}")
        inv = hex(f32(1.0 / 576.0))
        rr = (60, 64)
        for tau in range(2):
            m, q, t = sm[tau], sq[tau], sm[tau] + 1
            p.e(f"""
            v_mul_f32 {v(m)}, {inv}, {v(m)}
            v_mul_f32 {v(q)}, {inv}, {v(q)}
            v_fma_f32 {v(q)}, -{v(m)}, {v(m)}, {v(q)}
            v_max_f32 {v(q)}, 0, {v(q)}
            v_cvt_pk_bf16_f32 {v(t)}, {v(m)}, {v(q)}
            v_lshlrev_b32 {v(m)}, 16, {v(t)}
            v_and_b32 {v(q)}, 0xffff0000, {v(t)}
            v_add_f32 {v(q)}, {hex(f32(1e-5))}, {v(q)}
            v_cvt_pk_bf16_f32 {v(t)}, {v(q)}, {v(q)}
            v_lshlrev_b32 {v(q)}, 16, {v(t)}
            v_sqrt_f32 {v(q)}, {v(q)}
            s_nop 0
            v_cvt_pk_bf16_f32 {v(t)}, {v(q)}, {v(q)}
            v_lshlrev_b32 {v(q)}, 16, {v(t)}
            v_rcp_f32 {v(rr[tau])}, {v(q)}
            s_nop 0
            v_mul_f32 {v(rr[tau] + 2)}, {v(m)}, {v(rr[tau])}
            v_sub_f32 {v(rr[tau] + 2)}, 0, {v(rr[tau] + 2)}
            """)
        p.e("v_mov_b32 v68, 0xffff0000")
        n = 0
        for ks in range(18):
            for tau in range(2):
                for j in range(4):
                    x = XN + 8 * ks + 4 * tau + j
                    t = 70 + 2 * (n % 4)
                    n += 1
                    p.e(f"""
                    v_lshlrev_b32 {v(t)}, 16, {v(x)}
                    v_and_b32 {v(t + 1)}, v68, {v(x)}
                    v_pk_fma_f32 {v(t, 2)}, {v(t, 2)}, {v(rr[tau], 2)}, {v(rr[tau] + 2, 2)} op_sel_hi:[1,0,0]
                    v_cvt_pk_bf16_f32 {v(x)}, {v(t)}, {v(t + 1)}
                    """)

    def passes(self, variant):
        ks = []

        def add(kind, nk, n0, acc, srd, vreg, sbase, lit, breg, swap=False, half=False):
            for k in range(nk):
                sb, li = (sbase(k), lit(k))
                ks.append(dict(kind=kind, n=n0 + k, k=k, nk=nk, acc=acc, srd=srd, vreg=vreg, sbase=sb, lit=li,
                               b=breg(k), swap=swap, half=half))

        xn = lambda k: [v(XN + 8 * k, 4), v(XN + 8 * k + 4, 4)]
        hh = lambda k: [a(A_H + 8 * k, 4), a(A_H + 8 * k + 4, 4)]
        if variant != "N":
            add("X", 18, 0, ACC[0], S_QKV, VQ, lambda k: sQX, lambda k: k * 32 * 3456, xn, swap=(variant == "V"))
        add("Y", 18, 18, ACC[1], S_QKV, VQ, lambda k: sQY, lambda k: k * 32 * 3456, xn)
        for i in range(4):
            add(f"G{i}", 18, 36 + 36 * i, ACC[0], S_WG, VG, lambda k: sG0, lambda k: k * 32 * 9216 + 128 * i, xn)
            add(f"U{i}", 18, 54 + 36 * i, ACC[1], S_WU, VG, lambda k: sG0, lambda k: k * 32 * 9216 + 128 * i, xn)
        add("H", 18, 180, ACC[0], S_HALF, VH, lambda k: sH, lambda k: k * 32 * 9216, xn, half=True)
        for i in range(9):
            add(f"D{i}", 9, 198 + 9 * i, ACC[1 - (i & 1)], S_WD, VD, lambda k: sD0 if k < 8 else sDH,
                lambda k: (k * 32 * 1152 if k < 8 else 0) + 128 * i, hh)
        return ks

    @staticmethod
    def dma_items(kst):
        pos = (kst["n"] % 36) * 4096
        tag = f"g{kst['n'] // 3}"
        return [("s", f"s_add_u32 m0, {s(sW1K)}, {pos}"),
                ("s", f"s_add_u32 {s(sOFF)}, {s(kst['sbase'])}, {kst['lit']}"),
                ("m", f"buffer_load_dwordx4 {v(kst['vreg'])}, {s(kst['srd'], 4)}, {s(sOFF)} offen lds", tag)]

    @staticmethod
    def kv_items(b):
        z = Z[KV_SLOT[b]]
        tag = f"kv{b}"
        ld = lambda off: ("m", f"buffer_load_dwordx4 {v(PV['VKV'])}, {s(S_WS, 4)}, {s(sOFF)} offen "
                               f"offset:{off} sc1 lds", tag)
        return [("s", f"s_add_u32 m0, {s(sKVM)}, {z}"), ("s", f"s_add_u32 {s(sOFF)}, {s(sKV)}, {b * IMG}"),
                ld(0), ld(1024), ld(2048), ld(3072),
                ("s", f"s_add_u32 m0, {s(sKVM)}, {z + 4096}"),
                ("s", f"s_add_u32 {s(sOFF)}, {s(sKV)}, {b * IMG + 4096}"), ld(0)]

    def first_dma(self, p, variant, g0, g1):
        ks = self.passes(variant)
        for kst in ks[3 * g0:3 * g1]:
            it = self.dma_items(kst)
            p.e(it[0][1]); p.e(it[1][1]); p.e(it[2][1], tag=it[2][2])

    def gemm(self, p, variant):
        ks = self.passes(variant)
        ngrp = len(ks) // 3
        j0 = ks[0]["n"] // 3
        frags = []
        for j in range(ngrp):
            for t in range(4):
                for kk in range(3):
                    frags.append((ks[3 * j + kk], t))
        nslot = 2 * len(frags)
        shadow = [[] for _ in range(nslot + 64)]
        post = [[] for _ in range(nslot + 64)]
        last = {}
        first = {}
        for f, (kst, t) in enumerate(frags):
            for tau in range(2):
                last[(kst["kind"], t, tau)] = 2 * f + tau
                first.setdefault((kst["kind"], t, tau), 2 * f + tau)

        def place(items, k, cap=1):
            for it in items:
                if it[0] == "s":
                    while len(shadow[k]) >= 1:
                        k += 1
                    shadow[k].append(it)
                else:
                    while len(post[k]) >= cap:
                        k += 1
                    post[k].append(it)
                    k += 1 if len(post[k]) >= cap else 0
            return k

        for f in range(1, len(frags)):
            shadow[2 * f - 1].append(("lg", f"f{f}"))
        bslot = lambda j: 24 * (j - j0) - 2 * D_PF
        extra_wait = {}
        after_bar = {}
        for j in range(j0 + 1, j0 + ngrp):
            shadow[bslot(j)].append(("bar", j))
        kc = 0
        for j in range(j0, j0 + ngrp):
            jj = j - j0 + 10
            if jj < ngrp:
                k = max(bslot(j), -1) + 1
                for kk in range(3):
                    kc = place(self.dma_items(ks[3 * jj + kk]), max(kc, k + (8 if j > j0 else 4) * kk))

        tp = [0]

        def qk_epilogue(kind, acc, ea, ssc, simg):
            k = 0
            for t in range(4):
                for tau in range(2):
                    r = acc + 8 * t + 4 * tau
                    tmp = (38, 44, 46)[tp[0] % 3]
                    tp[0] += 1
                    its = [("v", f"v_mul_f32 {v(r + j)}, {s(ssc)}, {v(r + j)}") for j in range(4)]
                    its += [("v", f"v_cvt_pk_bf16_f32 {v(tmp + j)}, {v(r + 2 * j)}, {v(r + 2 * j + 1)}") for j in range(2)]
                    its += [("m", f"buffer_store_dwordx2 {v(tmp, 2)}, {v(ea + t)}, {s(S_WS, 4)}, {s(simg)} offen "
                                  f"offset:{64 * tau} sc1", "qkv")]
                    k = place(its, max(k, last[(kind, t, tau)] + 5))
            return k

        kend = 0
        if variant == "V":
            k = 0
            for t in range(4):
                r = ACC[0] + 8 * t
                its = [("v", f"v_cvt_pk_bf16_f32 {v(44 + j)}, {v(r + 2 * j)}, {v(r + 2 * j + 1)}") for j in range(4)]
                its += [("m", f"buffer_store_dwordx4 {v(44, 4)}, {v(EAX + t)}, {s(S_WS, 4)}, {s(sIMX)} offen sc1", "qkv"),
                        ("m", f"buffer_store_dwordx4 {v(40, 4)}, {v(EA1 + t)}, {s(S_WS, 4)}, {s(sIMX)} offen sc1", "qkv")]
                k = place(its, max(k, last[("X", t, 1)] + 5))
        elif variant == "K":
            qk_epilogue("X", ACC[0], EAX, sSCX, sIMX)
        tp[0] = 0
        kend = qk_epilogue("Y", ACC[1], EAY, sSCY, sIMY)
        jpub = j0 + (kend + 2 * D_PF) // 24 + 5
        extra_wait[jpub] = ["qkv", "snap"]
        place([("v", "v_mov_b32 v38, 1"),
               ("m", f"buffer_atomic_add v38, {v(VDBG)}, {s(S_DBG, 4)}, 0 offen sc1", "pub1")], bslot(jpub) + 1)

        def h_out(r, hreg, k):
            its = []
            for j in range(2):
                tmp = 38 + (tp[0] & 1)
                tp[0] += 1
                its += [("v", f"v_cvt_pk_bf16_f32 {v(tmp)}, {v(r + 2 * j)}, {v(r + 2 * j + 1)}"),
                        ("v", f"v_accvgpr_write_b32 {a(hreg + j)}, {v(tmp)}")]
            return place(its, k)

        for i in range(4):
            nxt = f"G{i + 1}" if i < 3 else "H"
            k = 0
            for t in range(4):
                for tau in range(2):
                    g, u = ACC[0] + 8 * t + 4 * tau, ACC[1] + 8 * t + 4 * tau
                    its = [("v", f"v_mul_f32 {v(u + j)}, {v(g + j)}, {v(u + j)}") for j in range(4)]
                    k0 = max(k, last[(f"U{i}", t, tau)] + 5)
                    dead = first[(nxt, t, tau)]
                    free = sum(1 for q in range(k0, dead) if not post[q])
                    k = place(its, k0, cap=1 if free >= 10 else 2)
                    assert k <= dead, (i, t, tau, k, dead)
            for t in range(4):
                for tau in range(2):
                    k = h_out(ACC[1] + 8 * t + 4 * tau, A_H + 8 * (2 * i + (t >> 1)) + 4 * tau + 2 * (t & 1), k)
        k = 0
        for t in range(2):
            for tau in range(2):
                g, u = ACC[0] + 8 * t + 4 * tau, ACC[0] + 8 * (t + 2) + 4 * tau
                its = [("v", f"v_mul_f32 {v(u + j)}, {v(g + j)}, {v(u + j)}") for j in range(4)]
                k = place(its, max(k, last[("H", t + 2, tau)] + 5))
                k = h_out(u, A_H + 64 + 4 * tau + 2 * t, k)
        assert k < first[("D0", 0, 0)] + 48

        qn = [0]

        def d_items(i, t, tau):
            q = (28, 32, 40, 44)[qn[0] % 4]
            qn[0] += 1
            acc = ACC[1 - (i & 1)]
            r0, r1 = acc + 8 * t + 4 * tau, acc + 8 * (t + 1) + 4 * tau
            return [("v", f"v_cvt_pk_bf16_f32 {v(q)}, {v(r0)}, {v(r0 + 1)}"),
                    ("v", f"v_cvt_pk_bf16_f32 {v(q + 2)}, {v(r1)}, {v(r1 + 1)}"),
                    ("v", f"v_cvt_pk_bf16_f32 {v(q + 1)}, {v(r0 + 2)}, {v(r0 + 3)}"),
                    ("v", f"v_cvt_pk_bf16_f32 {v(q + 3)}, {v(r1 + 2)}, {v(r1 + 3)}"),
                    ("v", f"v_permlane16_swap_b32 {v(q)}, {v(q + 2)}"),
                    ("v", f"v_permlane16_swap_b32 {v(q + 1)}, {v(q + 3)}"),
                    ("s", f"s_add_u32 {s(sOFF2)}, {s(sPART)}, {tau * 294912 + (8 * i + 2 * t) * 256}"),
                    ("m", f"buffer_store_dwordx4 {v(q, 4)}, {v(PST)}, {s(S_WS, 4)}, {s(sOFF2)} offen sc1", "part")]

        tail_items = []
        k = 0
        for i in range(9):
            for t in (0, 2):
                for tau in range(2):
                    its = d_items(i, t, tau)
                    k0 = max(k, last[(f"D{i}", t + 1, tau)] + 5)
                    if i == 8 and (t == 2 or k0 + 12 > nslot):
                        tail_items += its
                        continue
                    k = place(its, k0)
                    if i < 7:
                        assert k <= first[(f"D{i + 2}", t, tau)]
            if i == 7:
                k_d7 = k

        jend = j0 + ngrp
        place([("m", f"buffer_load_dword v26, off, {s(S_DBG, 4)}, 0 sc1", "poll1")], bslot(jend - 20) + 3)
        extra_wait[jend - 9] = ["poll1"]
        k = place([("v", f"v_accvgpr_read_b32 {v(PV['VQM'])}, {a(PA['VQM'])}"),
                   ("v", f"v_accvgpr_read_b32 {v(PV['VQE'])}, {a(PA['VQE'])}"),
                   ("v", f"v_accvgpr_read_b32 v27, {a(PA['VKV'])}")], bslot(jend - 11))
        k = place([("v", f"v_readfirstlane_b32 {s(sT0)}, v26")], bslot(jend - 9) + 1)
        k = place([("s", "CHECK1")], k + 5)
        self.kv_early = {jend - 8: [0, 1], jend - 6: [2], jend - 4: [3], jend - 3: [4], jend - 1: [5]}
        assert k <= bslot(jend - 8)
        its = []
        for qt in range(2):
            its += [("s", f"s_lshr_b32 {s(sT0)}, {s(sW)}, 1"),
                    ("s", f"s_lshl_b32 {s(sT1)}, {s(sT0)}, 11"),
                    ("s", f"s_add_u32 {s(sT1)}, {s(sT1)}, {s(sQB)}"),
                    ("m", f"buffer_load_dwordx4 {v(QM + 4 * qt, 4)}, {v(PV['VQM'])}, {s(S_WS, 4)}, {s(sT1)} offen "
                          f"offset:{1024 * qt} sc1", "q"),
                    ("s", f"s_lshl_b32 {s(sT1)}, {s(sT0)}, 9"),
                    ("s", f"s_add_u32 {s(sT1)}, {s(sT1)}, {s(sQB)}"),
                    ("s", f"s_add_u32 {s(sT1)}, {s(sT1)}, 8192"),
                    ("m", f"buffer_load_dword {v(36 + qt)}, {v(PV['VQE'])}, {s(S_WS, 4)}, {s(sT1)} offen "
                          f"offset:{8 * qt} sc1", "q")]
        k = max(place(its, k), kc)
        for j, blks in self.kv_early.items():
            for b in blks:
                its = [(x[0], x[1].replace(v(PV["VKV"]) + ",", "v27,"), *x[2:]) for x in self.kv_items(b)]
                k = place(its, max(k, bslot(j) + 1))
        kz = bslot(jend - 16)
        kz = place([("v", f"v_mov_b32 {v(OB + r)}, 0") for r in range(32)], kz)
        kz = place([("v", f"v_mov_b32 {v(QE + r)}, 0") for r in range(24)], kz)
        late = [n for n in PARKED if n not in ("VQM", "VQE")]
        its = [("v", f"v_accvgpr_read_b32 {v(PV[n])}, {a(PA[n])}") for n in late]
        kz = place(its, max(kz, k_d7), cap=2)
        assert kz <= nslot, (kz, nslot)
        for q in range(nslot, nslot + 64):
            assert not shadow[q] and not post[q], q

        def tr(f, e):
            kst, t = frags[f]
            pos = (kst["n"] % 36) * 4096
            if kst["half"]:
                st = pos + (t >> 1) * 2048 + 256 * e
                reg = TRH + 2 * (st >> 16) + (t & 1)
            else:
                st = pos + 512 * e
                reg = TRA + 4 * (st >> 16) + t
            p.e(f"ds_read_b64_tr_b16 {a(A_RING + 4 * ((f + 12 * j0) % NRING) + 2 * e, 2)}, {v(reg)} offset:{st & 0xffff}", tag=f"f{f}")

        def run(it):
            if it[0] == "lg":
                p.wait(lg=it[1])
            elif it[0] == "bar":
                p.wait(vm=[f"g{it[1]}"] + extra_wait.get(it[1], []))
                p.e("s_barrier")
            elif it[1] == "CHECK1":
                p.e(f"s_cmp_lg_u32 {s(sT0)}, 256\ns_cbranch_scc1 L_spin1\nL_back1:")
            else:
                p.e(it[1], tag=it[2] if len(it) > 2 else None)

        p.wait(vm=f"g{j0}")
        p.e("s_barrier")
        for f in range(D_PF):
            tr(f, 0); tr(f, 1)
        p.wait(lg="f0")
        for k in range(nslot):
            f, tau = k >> 1, k & 1
            kst, t = frags[f]
            if kst["kind"] in ("G0", "D0") and kst["k"] == 0 and t == 0 and tau == 0:
                self.stamp(p)
            d = v(kst["acc"] + 8 * t + 4 * tau, 4)
            c = "0" if kst["k"] == 0 else d
            w = a(A_RING + 4 * ((f + 12 * j0) % NRING), 4)
            x, y = (kst["b"][tau], w) if kst["swap"] else (w, kst["b"][tau])
            p.e(f"v_mfma_f32_16x16x32_bf16 {d}, {x}, {y}, {c}")
            for it in shadow[k]:
                run(it)
            if f + D_PF < len(frags):
                tr(f + D_PF, tau)
            for it in post[k]:
                run(it)
        return tail_items

    @staticmethod
    def lds_ref(base, st):
        return f"{v(PV[base + str(st >> 16)])} offset:{st & 0xffff}"

    def rd_km(self, p, kt):
        st = Z[KV_SLOT[kt >> 2]] + 1024 * (kt & 3)
        p.e(f"ds_read_b128 {a(A_KM + 4 * (kt & 1), 4)}, {self.lds_ref('KA', st)}", tag=f"km{kt}")

    def rd_ke(self, p, b):
        p.e(f"ds_read_b128 {a(A_KE + 4 * (b & 1), 4)}, {self.lds_ref('KE', Z[KV_SLOT[b]])}", tag=f"ke{b}")

    def rd_v(self, p, kt, e):
        st = Z[KV_SLOT[kt >> 2]] + 608 * (2 * (kt & 3) + e)
        p.e(f"ds_read_b128 {a(A_V + 8 * (kt & 1) + 4 * e, 4)}, {self.lds_ref('VA', st)}", tag=f"v{kt}_{e}")

    @staticmethod
    def qk_ext(d, kt, qt, c):
        T = kt & 3
        win = QE + 12 * qt + 6 * (T >> 1) + (2 if (T & 1) == 0 else 0)
        return f"v_mfma_f32_32x32x16_bf16 {v(d, 16)}, {a(A_KE + 4 * ((kt >> 2) & 1), 4)}, {v(win, 4)}, {c}"

    @staticmethod
    def qk_main(d, kt, qt):
        return f"v_mfma_f32_32x32x16_bf16 {v(d, 16)}, {a(A_KM + 4 * (kt & 1), 4)}, {v(QM + 4 * qt, 4)}, {v(d, 16)}"

    @staticmethod
    def pv(sreg, kt, qt, e):
        return (f"v_smfmac_f32_32x32x32_bf16 {v(OB + 16 * qt, 16)}, {a(A_V + 8 * (kt & 1) + 4 * e, 4)}, "
                f"{v(sreg + 8 * e, 8)}, {v(PV['IDX'])}")

    @staticmethod
    def max16(p, src, dst, init=None):
        if init is None:
            p.e(f"v_max3_f32 {v(dst)}, {v(src)}, {v(src + 1)}, {v(src + 2)}")
            p.e("\n".join(f"v_max3_f32 {v(dst)}, {v(dst)}, {v(src + j)}, {v(src + j + 1)}" for j in range(3, 15, 2)))
            p.e(f"v_max_f32 {v(dst)}, {v(dst)}, {v(src + 15)}")
        else:
            p.e("\n".join(f"v_max3_f32 {v(dst)}, {v(dst)}, {v(src + j)}, {v(src + j + 1)}" for j in range(0, 16, 2)))

    @staticmethod
    def set_c(p, m0, m1):
        p.e(f"""
        v_mov_b32 {v(m0 + 1)}, {v(m0)}
        v_mov_b32 {v(m1 + 1)}, {v(m1)}
        s_nop 0
        v_permlane32_swap_b32 {v(m0)}, {v(m0 + 1)}
        v_permlane32_swap_b32 {v(m1)}, {v(m1 + 1)}
        v_max_f32 {v(m0)}, {v(m0)}, {v(m0 + 1)}
        v_max_f32 {v(m1)}, {v(m1)}, {v(m1 + 1)}
        """)
        for qt, m in ((0, m0), (1, m1)):
            p.e("\n".join(f"v_sub_f32 {v(CB + 16 * qt + r)}, 0, {v(m)}" for r in range(16)))

    def attention(self, p, tail_items):
        self.stamp(p)
        run = lambda it: p.e(it[1], tag=it[2] if len(it) > 2 else None)
        p.wait(vm=["kv0", "q"])
        p.e("s_barrier")
        self.rd_ke(p, 0)
        self.rd_km(p, 0)
        self.rd_km(p, 1)
        p.e(f"""
        s_and_b32 {s(sT0)}, {s(sW)}, 1
        s_cmp_eq_u32 {s(sT0)}, 0
        s_cselect_b64 s[44:45], -1, 0
        s_cselect_b64 s[46:47], 0, -1
        """)
        sa = (44, 46)
        for qt in range(2):
            for hp in range(2):
                for aa in range(2):
                    lo, hi = (s(sa[aa]), "0") if hp == 0 else ("0", s(sa[aa] + 1))
                    p.e(f"s_mov_b32 vcc_lo, {lo}\ns_mov_b32 vcc_hi, {hi}")
                    p.e(f"v_cndmask_b32 {v(QE + 12 * qt + 6 * hp + 2 + aa)}, 0, {v(36 + qt)}, vcc")
        ti = list(tail_items)
        p.wait(lg="km0")
        p.e(self.qk_ext(SB, 0, 0, "0"))
        p.e(self.qk_main(SB, 0, 0))
        p.e(self.qk_ext(SB + 16, 0, 1, "0"))
        p.e(self.qk_main(SB + 16, 0, 1))
        for it in ti:
            if it[1].startswith("v_permlane") and p.ins[-1].op.startswith("v_cvt"):
                p.e("s_nop 0")
            run(it)
        if len(ti) < 12:
            p.e("s_nop 11")
        self.max16(p, SB, 28)
        self.max16(p, SB + 16, 30)
        self.set_c(p, 28, 30)
        if self.cfg.force_fallback:
            p.e("\n".join(f"v_mov_b32 {v(CB + r)}, 0x43800000" for r in range(32)))
        p.e("s_nop 0")
        p.e(self.qk_ext(SB, 0, 0, v(CB, 16)))
        p.e(self.qk_main(SB, 0, 0))
        p.e("s_nop 11")

        NU = 128
        shadow = [[[] for _ in range(5)] for _ in range(NU)]
        mem = [[[] for _ in range(5)] for _ in range(NU)]
        side_mfma = [None] * NU
        valu = [[] for _ in range(NU)]
        CAPS = (1, 1, 2, 2, 1)

        def place(items, pos, memcap=1):
            for it in items:
                if it[0] in ("s", "w"):
                    while len(shadow[pos >> 2][pos & 3]) >= CAPS[pos & 3]:
                        pos += 1
                    shadow[pos >> 2][pos & 3].append(it)
                elif it[0] == "v":
                    valu[pos >> 2].append(it)
                    pos = (pos | 3) + 1
                else:
                    while len(mem[pos >> 2][pos & 3]) >= memcap:
                        pos += 1
                    mem[pos >> 2][pos & 3].append(it)
                    pos += 1
            return pos

        extra = {}
        for b in range(1, 16):
            shadow[8 * b - 4][3] += [("bar", b), ("pad",)]
        for kt in range(64):
            if kt >= 2:
                mem[2 * kt - 3][1].append(("km", kt))
            if kt >= 1:
                shadow[2 * kt - 1][0].append(("w", dict(lg=f"km{kt}")))
            mem[2 * kt][0].append(("vv", kt, 0))
            mem[2 * kt][2].append(("vv", kt, 1))
            shadow[2 * kt + 1][1].append(("w", dict(lg=f"v{kt}_1")))
            if kt % 4 == 0 and kt > 0:
                mem[2 * kt - 3][0].append(("ke", kt >> 2))
                shadow[2 * kt - 2][3].append(("w", dict(lg=f"ke{kt >> 2}")))
        abpos = lambda b: 4 * (8 * b - 4) + 4 if b > 0 else 0
        pos = 0
        issue_at = {6: 0, 7: 0, 8: 2, 9: 3, 10: 7, 11: 8, 12: 9, 13: 10, 14: 11, 15: 13}
        issue_at[7] = 1
        events = []
        for b, ab in issue_at.items():
            events.append((abpos(max(ab, b - 4)), self.kv_items(b)))

        def wo_items(m):
            its = [("s", f"s_add_u32 {s(sOFF)}, {s(sWOB)}, {4 * m * 36 * 1152}")]
            for pp in range(5):
                its += [("s", f"s_add_u32 m0, {s(sWOM)}, {Z[WO_SLOT[m]] + 1024 * pp}"), ("s", "s_nop 0"),
                        ("m", f"buffer_load_dwordx4 {v(PV[f'VWO{pp}'])}, {s(S_WO, 4)}, {s(sOFF)} offen lds", "wo")]
            return its

        def woe_items():
            its = [("s", f"s_mul_i32 {s(sT0)}, {s(sW)}, 3"), ("s", f"s_min_u32 {s(sT0)}, {s(sT0)}, 7"),
                   ("s", f"s_lshl_b32 {s(sT0)}, {s(sT0)}, 10"),
                   ("s", f"s_and_b32 {s(sT1)}, {s(sC)}, 7"), ("s", f"s_mul_i32 {s(sT1)}, {s(sT1)}, 144")]
            for y in range(3):
                its += [("s", f"s_add_u32 m0, {s(sT0)}, {Z[WO_SLOT[4]] + 1024 * y}"), ("s", "s_nop 0"),
                        ("m", f"buffer_load_dwordx4 {v(PV[f'VWE{y}'])}, {s(S_WO, 4)}, {s(sT1)} offen lds", "wo")]
            return its

        events.append((abpos(4) + 16, wo_items(0)))
        events.append((abpos(5) + 16, wo_items(1)))
        events.append((abpos(6) + 16, wo_items(2)))
        events.append((abpos(12) + 16, wo_items(3)))
        events.append((abpos(14), woe_items()))
        extra[3] = ["part"]
        FO = PV["FOLD"]
        events.append((abpos(3), [("v", f"v_add_u32 {v(FO)}, 1, {v(FO)}"),
                                  ("m", f"buffer_store_dword {v(FO)}, {v(PV['FLA'])}, {s(S_WS, 4)}, 0 offen sc1", "fl2")]))
        events.append((abpos(7) - 8, [("m", f"buffer_load_dword v26, {v(PV['POA'])}, {s(S_WS, 4)}, 0 offen sc1", "poll2")]))
        extra[8] = ["poll2"]
        loads = []
        red = []
        fr = iter(PFRAG)
        for T in range(5):
            r = next(fr)
            loads.append([("m", f"buffer_load_dwordx4 {a(r, 4)}, {v(PV['VXR' if T < 4 else 'VXR4'])}, {s(S_X, 4)}, "
                                f"{s(sXR)} offen offset:{32 * T}", f"p{len(red)}")])
            red.append((T, r, True))
        events.append((abpos(6), [x for l in loads for x in l]))
        its = [("v", f"v_sub_u32 v26, v26, {v(PV['SNAP'])}"), ("v", "v_cmp_eq_u32 vcc, 0, v26"), ("s", "CHECK2")]
        for pp in range(8):
            its.append(("s", f"s_add_u32 {s(sOFF2)}, {s(sPR)}, {pp * 36864}"))
            for T in range(4):
                r = next(fr)
                its.append(("m", f"buffer_load_dwordx4 {a(r, 4)}, {v(PV['VPR'])}, {s(S_WS, 4)}, {s(sOFF2)} offen "
                                 f"offset:{512 * T} sc1", f"p{len(red)}"))
                red.append((T, r, False))
            if pp & 1:
                r = next(fr)
                its.append(("s", f"s_add_u32 {s(sOFF2)}, {s(sPR)}, {(pp >> 1) * 73728}"))
                its.append(("m", f"buffer_load_dwordx4 {a(r, 4)}, {v(PV['VPR4'])}, {s(S_WS, 4)}, {s(sOFF2)} offen "
                                 f"offset:2048 sc1", f"p{len(red)}"))
                red.append((4, r, False))
        chains = {"off": 0}
        events.sort(key=lambda x: x[0])
        pos2 = place(its, abpos(8))
        for at, items in events:
            uses_off = any("m0" in x[1] for x in items)
            start = max(at, chains["off"]) if uses_off else at
            end = place(items, start)
            if uses_off:
                chains["off"] = end
        u0 = 82
        assert (pos2 >> 2) <= u0 + 24, pos2 >> 2
        for i, (T, r, firstuse) in enumerate(red):
            side_mfma[u0 + i] = (i, T, r, firstuse)

        def run2(it):
            if it[0] == "bar":
                p.wait(vm=[f"kv{it[1]}"] + extra.get(it[1], []))
                p.e("s_barrier")
            elif it[0] == "pad":
                pass
            elif it[0] == "w":
                p.wait(**it[1])
            elif it[0] == "km":
                self.rd_km(p, it[1])
            elif it[0] == "ke":
                self.rd_ke(p, it[1])
            elif it[0] == "vv":
                self.rd_v(p, it[1], it[2])
            elif it[1] == "CHECK2":
                p.e("s_cbranch_vccnz L_spin2\nL_back2:")
            else:
                run(it)

        for u in range(NU):
            cur, nxt, prv = SB + 16 * (u % 3), SB + 16 * ((u + 1) % 3), SB + 16 * ((u - 1) % 3)
            mf = [None] * 4
            if u + 1 < NU:
                mf[0] = self.qk_ext(nxt, (u + 1) >> 1, (u + 1) & 1, v(CB + 16 * ((u + 1) & 1), 16))
                mf[1] = self.qk_main(nxt, (u + 1) >> 1, (u + 1) & 1)
            if u > 0:
                mf[2] = self.pv(prv, (u - 1) >> 1, (u - 1) & 1, 0)
                mf[3] = self.pv(prv, (u - 1) >> 1, (u - 1) & 1, 1)
            counts = (3, 3, 3, 3, 4) if side_mfma[u] else (4, 4, 4, 4, 0)
            r = 0
            for ps in range(5):
                if ps < 4:
                    if mf[ps]:
                        p.e(mf[ps])
                    for it in shadow[u][ps]:
                        run2(it)
                    if ps == 3 and side_mfma[u]:
                        p.wait(vm=f"p{side_mfma[u][0]}")
                    for it in mem[u][ps]:
                        run2(it)
                elif side_mfma[u]:
                    i, T, fr_, firstuse = side_mfma[u]
                    d = v(RACC + 4 * T, 4)
                    p.e(f"v_mfma_f32_16x16x32_bf16 {d}, {a(A_SEL + (4 if T == 4 else 0), 4)}, {a(fr_, 4)}, "
                        f"{'0' if firstuse else d}")
                for _ in range(counts[ps]):
                    p.e(f"v_exp_f32 {v(cur + r)}, {v(cur + r)}")
                    r += 1
            for it in valu[u]:
                run2(it)
        u = NU - 1
        p.e("s_nop 1")
        p.e(self.pv(SB + 16 * (u % 3), u >> 1, u & 1, 0))
        p.e(self.pv(SB + 16 * (u % 3), u >> 1, u & 1, 1))

    def tail(self, p):
        self.stamp(p)
        p.e(f"""
        s_lshl_b32 {s(sT0)}, {s(sOST)}, 13
        s_add_u32 {s(sT0)}, {s(sT0)}, {WS_OM}
        s_lshl_b32 {s(sT1)}, {s(sOST)}, 10
        s_add_u32 {s(sT1)}, {s(sT1)}, {WS_OM}
        s_mov_b32 {s(sOFF)}, {hex(f32(2.0 ** 100))}
        s_nop 7
        """)
        for qt in range(2):
            o, t = OB + 16 * qt, 28 + 2 * qt
            p.e(f"v_add_f32 {v(t)}, {v(o + 10)}, {v(o + 12)}")
            p.e(f"v_add_f32 {v(t + 1)}, abs({v(o)}), abs({v(o + 1)})")
            p.e("\n".join(f"v_add_f32 {v(t + 1)}, abs({v(o + j)}), {v(t + 1)}" for j in range(2, 10)))
        p.e(f"""
        v_max_f32 v32, v28, v30
        v_add_f32 v33, v28, v30
        v_add_f32 v33, v33, v29
        v_add_f32 v33, v33, v31
        v_mul_f32 v33, 0, v33
        v_add_f32 v32, v32, v33
        v_cmp_nlt_f32 vcc, v32, {s(sOFF)}
        s_cbranch_vccnz L_fallback
        L_fin:
        """)
        for qt in range(2):
            o, t = OB + 16 * qt, 28 + 2 * qt
            p.e(f"v_add_f32 {v(t)}, {v(o + 10)}, {v(o + 12)}")
        p.e("v_rcp_f32 v28, v28\nv_rcp_f32 v30, v30\ns_nop 0")
        for qt in range(2):
            o, t = OB + 16 * qt, 28 + 2 * qt
            q = 40 + 4 * qt
            p.e("\n".join(f"v_mul_f32 {v(o + j)}, {v(t)}, {v(o + j)}" for j in range(10)))
            p.e("\n".join(f"v_cvt_pk_bf16_f32 {v(q + j)}, {v(o + 2 * j)}, {v(o + 2 * j + 1)}" for j in range(4)))
            p.e(f"v_cvt_pk_bf16_f32 {v(t + 1)}, {v(o + 8)}, {v(o + 9)}")
            p.e(f"buffer_store_dwordx4 {v(q, 4)}, {v(PV['OSM'])}, {s(S_WS, 4)}, {s(sT0)} offen offset:{512 * qt} sc1", tag="o")
            p.e(f"buffer_store_dword {v(t + 1)}, {v(PV['OSE'])}, {s(S_WS, 4)}, {s(sT1)} offen offset:{256 * qt} sc1", tag="o")
        FO = PV["FOLD"]
        p.e(f"v_add_u32 {v(FO)}, 1, {v(FO)}")
        p.wait(vm="all")
        p.e(f"buffer_store_dword {v(FO)}, {v(PV['FLA'])}, {s(S_WS, 4)}, 0 offen sc1", tag="fl3")
        p.e("s_barrier")
        self.stamp(p)
        wreg = []
        for n in range(90):
            wreg.append(a(4 * n, 4) if n < 64 else v(112 + 4 * (n - 64), 4))
        half = lambda n, e: (a(4 * n + 2 * e, 2) if n < 64 else v(112 + 4 * (n - 64) + 2 * e, 2))
        for ks in range(18):
            base = Z[WO_SLOT[ks >> 2]] + 5120 * (ks & 3)
            for T in range(5):
                n = 5 * ks + T
                for e in range(2):
                    st = base + 32 * T + 1280 * e
                    if len(p.lg) >= 14:
                        p.wait(lg=p.lg[5])
                    p.e(f"ds_read_b64_tr_b16 {half(n, e)}, {v(PV['WOA' + str(st >> 16)])} offset:{st & 0xffff}", tag=f"w{n}")
        p.e(f"""
        s_mov_b32 {s(sSPIN)}, {SPIN_LIMIT}
        s_lshl_b32 {s(sT0)}, {s(sRB)}, 17
        s_lshl_b32 {s(sT1)}, {s(sOLD)}, 4
        s_add_u32 {s(sT0)}, {s(sT0)}, {s(sT1)}
        s_add_u32 {s(sT0)}, {s(sT0)}, {WS_OM}
        s_lshl_b32 {s(sT1)}, {s(sRB)}, 14
        s_lshl_b32 {s(sOFF)}, {s(sOLD)}, 3
        s_add_u32 {s(sT1)}, {s(sT1)}, {s(sOFF)}
        s_add_u32 {s(sT1)}, {s(sT1)}, {WS_OE}
        L_poll3:
        """)
        p.e(f"buffer_load_dword v26, {v(PV['POA'])}, {s(S_WS, 4)}, 0 offen sc1", tag="poll3")
        p.e(f"s_sub_u32 {s(sSPIN)}, {s(sSPIN)}, 1")
        p.wait(vm="all")
        p.e(f"""
        v_sub_u32 v26, v26, {v(PV['SNAP'])}
        v_cmp_ne_u32 vcc, 2, v26
        s_cmp_eq_u32 {s(sSPIN)}, 0
        s_cbranch_scc1 L_go3
        s_cbranch_vccnz L_poll3
        L_go3:
        """)
        self.stamp(p)
        OF = [216 + 4 * i for i in range(10)] + [4, 8, 12, 28, 32, 40, 44, 100]
        for ks in range(16):
            if ks:
                p.e(f"s_add_u32 {s(sT0)}, {s(sT0)}, 8192")
            p.e(f"buffer_load_dwordx4 {v(OF[ks], 4)}, {v(PV['OLM'])}, {s(S_WS, 4)}, {s(sT0)} offen sc1", tag=f"o{ks}")
        for ks in range(16, 18):
            if ks == 17:
                p.e(f"s_add_u32 {s(sT1)}, {s(sT1)}, 8192")
            for hf in range(2):
                p.e(f"buffer_load_dwordx2 {v(OF[ks] + 2 * hf, 2)}, {v(PV['OLE'])}, {s(S_WS, 4)}, {s(sT1)} offen "
                    f"offset:{1024 * hf} sc1", tag=f"o{ks}")
        p.wait(lg="all")
        for ks in range(18):
            p.wait(vm=f"o{ks}")
            for T in range(5):
                d = v(RACC + 4 * T, 4)
                p.e(f"v_mfma_f32_16x16x32_bf16 {d}, {wreg[5 * ks + T]}, {v(OF[ks], 4)}, {d}")
        p.e("s_nop 3")
        for t in (0, 2):
            q = 4 + 2 * t
            r0, r1 = RACC + 4 * t, RACC + 4 * (t + 1)
            p.e(f"""
            v_cvt_pk_bf16_f32 {v(q)}, {v(r0)}, {v(r0 + 1)}
            v_cvt_pk_bf16_f32 {v(q + 1)}, {v(r0 + 2)}, {v(r0 + 3)}
            v_cvt_pk_bf16_f32 {v(q + 2)}, {v(r1)}, {v(r1 + 1)}
            v_cvt_pk_bf16_f32 {v(q + 3)}, {v(r1 + 2)}, {v(r1 + 3)}
            s_nop 1
            v_permlane16_swap_b32 {v(q)}, {v(q + 2)}
            v_permlane16_swap_b32 {v(q + 1)}, {v(q + 3)}
            """)
            p.e(f"buffer_store_dwordx4 {v(q, 4)}, {v(PV['OUA'])}, {s(S_OUT, 4)}, {s(sXR)} offen offset:{32 * t}", tag="out")
        r0 = RACC + 16
        p.e(f"v_cvt_pk_bf16_f32 v12, {v(r0)}, {v(r0 + 1)}\nv_cvt_pk_bf16_f32 v13, {v(r0 + 2)}, {v(r0 + 3)}")
        p.e(f"buffer_store_dwordx2 v[12:13], {v(PV['OU4'])}, {s(S_OUT, 4)}, {s(sXR)} offen", tag="out")
        self.finish(p)

    def finish(self, p):
        if self.cfg.stamps:
            p.wait(vm="all")
            self.stamp(p)
            p.e(f"""
            s_memrealtime s[100:101]
            s_waitcnt lgkmcnt(0)
            s_lshl_b32 {s(sT0)}, s2, 2
            s_add_u32 {s(sT0)}, {s(sT0)}, {s(sW)}
            s_lshl_b32 {s(sT0)}, {s(sT0)}, 7
            s_add_u32 {s(sT0)}, {s(sT0)}, {WS_STAMP}
            """)
            for i in range(self.nstamp):
                p.e(f"v_mov_b32 v1, {s(STAMP0 + 2 * i)}")
                p.e(f"buffer_store_dword v1, off, {s(S_WS, 4)}, {s(sT0)} offset:{4 * i}")
            p.e("v_mov_b32 v1, s100")
            p.e(f"buffer_store_dword v1, off, {s(S_WS, 4)}, {s(sT0)} offset:64")
            p.e("v_mov_b32 v1, s3")
            p.e(f"buffer_store_dword v1, off, {s(S_WS, 4)}, {s(sT0)} offset:68")
        p.e("L_exit:\ns_endpgm")

    def spins(self):
        p = Prog()
        p.e(f"""
        L_spin1:
        s_mov_b32 {s(sSPIN)}, {SPIN_LIMIT}
        L_spin1_loop:
        buffer_load_dword v26, off, {s(S_DBG, 4)}, 0 sc1
        s_sub_u32 {s(sSPIN)}, {s(sSPIN)}, 1
        """)
        p.wait(vm="all")
        p.e(f"""
        v_readfirstlane_b32 {s(sT0)}, v26
        s_cmp_eq_u32 {s(sSPIN)}, 0
        s_cbranch_scc1 L_back1
        s_nop 1
        s_cmp_lg_u32 {s(sT0)}, 256
        s_cbranch_scc1 L_spin1_loop
        s_branch L_back1
        L_spin2:
        s_mov_b32 {s(sSPIN)}, {SPIN_LIMIT}
        L_spin2_loop:
        buffer_load_dword v26, {v(PV['POA'])}, {s(S_WS, 4)}, 0 offen sc1
        s_sub_u32 {s(sSPIN)}, {s(sSPIN)}, 1
        """)
        p.wait(vm="all")
        p.e(f"""
        v_sub_u32 v26, v26, {v(PV['SNAP'])}
        v_cmp_eq_u32 vcc, 0, v26
        s_cmp_eq_u32 {s(sSPIN)}, 0
        s_cbranch_scc1 L_back2
        s_cbranch_vccnz L_spin2_loop
        s_branch L_back2
        """)
        return p

    def fallback(self):
        p = Prog()
        ld = lambda d, reg, off: p.e(f"buffer_load_dwordx4 {d}, {v(reg)}, {s(S_WS, 4)}, {s(sOFF2)} offen offset:{off} sc1", tag="fb")
        p.e(f"""
        L_fallback:
        s_waitcnt vmcnt(0) lgkmcnt(0)
        v_mov_b32 v28, 0xff800000
        v_mov_b32 v30, 0xff800000
        v_cmp_gt_u32 vcc, {LDS_OOB}, {v(PV['VA0'])}
        v_mov_b32 v32, {OOB}
        s_mov_b32 {s(sOFF2)}, {s(sFB)}
        s_mov_b32 {s(sSPIN)}, 0
        v_cndmask_b32 v32, v32, {v(PV['VA0'])}, vcc
        L_fb_max:
        """)
        ld(a(A_KE, 4), PV["KE0"], 0)
        for T in range(4):
            ld(a(A_KM + 4 * (T & 1), 4), PV["KA0"], 1024 * T)
            p.wait(vm="all")
            for qt in range(2):
                p.e(self.qk_ext(SB + 16 * qt, T, qt, "0"))
                p.e(self.qk_main(SB + 16 * qt, T, qt))
            p.e("s_nop 11")
            for qt in range(2):
                self.max16(p, SB + 16 * qt, 28 + 2 * qt, init=True)
        p.e(f"""
        s_add_u32 {s(sOFF2)}, {s(sOFF2)}, {IMG}
        s_add_u32 {s(sSPIN)}, {s(sSPIN)}, 1
        s_cmp_lt_u32 {s(sSPIN)}, 16
        s_cbranch_scc1 L_fb_max
        """)
        self.set_c(p, 28, 30)
        p.e("\n".join(f"v_mov_b32 {v(OB + r)}, 0" for r in range(32)))
        p.e(f"""
        s_mov_b32 {s(sOFF2)}, {s(sFB)}
        s_mov_b32 {s(sSPIN)}, 0
        L_fb_att:
        """)
        ld(a(A_KE, 4), PV["KE0"], 0)
        for T in range(4):
            ld(a(A_KM + 4 * (T & 1), 4), PV["KA0"], 1024 * T)
            if T == 3:
                p.e(f"s_add_u32 {s(sOFF2)}, {s(sOFF2)}, 608")
            for e in range(2):
                ld(a(A_V + 8 * (T & 1) + 4 * e, 4), 32, 608 * (2 * T + e - (1 if T == 3 else 0)))
            p.wait(vm="all")
            for qt in range(2):
                p.e(self.qk_ext(SB + 16 * qt, T, qt, v(CB + 16 * qt, 16)))
                p.e(self.qk_main(SB + 16 * qt, T, qt))
            p.e("s_nop 11")
            p.e("\n".join(f"v_exp_f32 {v(SB + r)}, {v(SB + r)}" for r in range(32)))
            p.e("s_nop 1")
            for qt in range(2):
                for e in range(2):
                    p.e(self.pv(SB + 16 * qt, T, qt, e))
            p.e("s_nop 7")
        p.e(f"""
        s_add_u32 {s(sOFF2)}, {s(sOFF2)}, {IMG - 608}
        s_add_u32 {s(sSPIN)}, {s(sSPIN)}, 1
        s_cmp_lt_u32 {s(sSPIN)}, 16
        s_cbranch_scc1 L_fb_att
        s_nop 11
        s_branch L_fin
        """)
        return p

    def build_variant(self, variant):
        self.nstamp = 0
        p = Prog()
        marks = []
        if self.cfg.stamps:
            p.e("s_memrealtime s[100:101]\ns_waitcnt lgkmcnt(0)\ns_mov_b32 s3, s100")
        self.prologue(p)
        marks.append(len(p.ins))
        self.first_dma(p, variant, 0, 7)
        marks.append(len(p.ins))
        self.addresses(p)
        marks.append(len(p.ins))
        if variant == "V":
            self.v_addr(p)
        elif variant == "K":
            self.qk_addr(p, EAX, sBX)
        marks.append(len(p.ins))
        self.layernorm(p)
        self.stamp(p)
        marks.append(len(p.ins))
        self.first_dma(p, variant, 7, 10)
        tail_items = self.gemm(p, variant)
        self.attention(p, tail_items)
        self.tail(p)
        marks.append(len(p.ins))
        errs = check_hazards(p.ins, variant)
        assert not errs, "\n".join(errs[:10]) + f"\n{len(errs)} hazards"
        seg = []
        prev = 0
        for m in marks:
            seg.append([i.text if i.kind == "label" else "    " + i.text for i in p.ins[prev:m]])
            prev = m
        return seg

    def build(self):
        segs = {vr: self.build_variant(vr) for vr in "VKN"}
        for i in (0, 2, 4):
            assert segs["V"][i] == segs["K"][i] == segs["N"][i], f"segment {i} differs between variants"
        lasts = [segs[vr][5] for vr in "VKN"]
        n = 0
        while n < min(map(len, lasts)) and lasts[0][-1 - n] == lasts[1][-1 - n] == lasts[2][-1 - n]:
            n += 1
        out = []

        def dispatch(i, bodies):
            out.append(f"    s_cmp_lt_u32 {s(sC)}, 9\n    s_cbranch_scc1 L_s{i}_V\n    s_cmp_lt_u32 {s(sC)}, 11\n"
                       f"    s_cbranch_scc1 L_s{i}_K")
            out.extend(bodies["N"])
            out.append(f"    s_branch L_s{i}_end\nL_s{i}_K:")
            out.extend(bodies["K"])
            out.append(f"    s_branch L_s{i}_end\nL_s{i}_V:")
            out.extend(bodies["V"])
            out.append(f"L_s{i}_end:")

        out.extend(segs["V"][0])
        dispatch(1, {vr: segs[vr][1] for vr in "VKN"})
        out.extend(segs["V"][2])
        dispatch(3, {vr: segs[vr][3] for vr in "VKN"})
        out.extend(segs["V"][4])
        dispatch(5, {vr: segs[vr][5][:len(segs[vr][5]) - n] for vr in "VKN"})
        out.extend(lasts[0][len(lasts[0]) - n:])
        for q in (self.spins(), self.fallback()):
            errs = check_hazards(q.ins, "side")
            assert not errs, "\n".join(errs[:10])
            out.append(q.text())
        self.common = n
        head = f"""; Fused LayerNorm + multi-head attention + bilinear GLU block, one persistent launch (256 workgroups).
; @launch grid=(256,1,1) block=(256,1,1) lds=163840
.amdgcn_target "amdgcn-amd-amdhsa--gfx950"
.text
.globl {NAME}_kernel
.p2align 8
.type {NAME}_kernel,@function
{NAME}_kernel:
"""
        tail = f"""    s_endpgm
.fill 64, 4, 0xbf800000
L_code_end:
.section .rodata,"a"
.p2align 6
.amdhsa_kernel {NAME}_kernel
  .amdhsa_next_free_vgpr 512
  .amdhsa_next_free_sgpr 102
  .amdhsa_accum_offset 256
  .amdhsa_group_segment_fixed_size 0
  .amdhsa_kernarg_size 80
  .amdhsa_user_sgpr_count 2
  .amdhsa_user_sgpr_kernarg_segment_ptr 1
  .amdhsa_system_sgpr_workgroup_id_x 1
  .amdhsa_float_denorm_mode_32 3
.end_amdhsa_kernel
"""
        return head + "\n".join(out) + "\n" + tail


def generate(**kw):
    cfg = Cfg()
    for k_, v_ in kw.items():
        assert hasattr(cfg, k_), k_
        setattr(cfg, k_, v_)
    g = Gen(cfg)
    return g.build(), g


if __name__ == "__main__":
    kw = {}
    out = None
    for arg in sys.argv[1:]:
        if "=" in arg:
            k_, v_ = arg.split("=")
            kw[k_] = eval(v_)
        else:
            out = arg
    txt, g = generate(**kw)
    open(out or f"cdna_kernels/{NAME}.s", "w").write(txt)
    print("lines", txt.count("\n"), "common tail", g.common)
```
